```python
import torch

def _softmax(x, axis=-1):
    return torch.softmax(x, dim=axis)
def _gelu(x):
    return torch.nn.functional.gelu(x, approximate="tanh")
def _silu(x):
    return torch.nn.functional.silu(x)
def _sigmoid(x):
    return torch.sigmoid(x)
def _layernorm(x, axis=-1, eps=1e-5):
    m = x.mean(dim=axis, keepdim=True)
    v = x.var(dim=axis, keepdim=True, unbiased=False)
    return (x - m) / torch.sqrt(v + eps)
def _scatter_add(tgt, idx, src, axis=0):
    return tgt.clone().index_add_(axis, idx, src)
def _segment_sum(src, seg, n):
    out = torch.zeros((n,) + src.shape[1:], dtype=src.dtype)
    return out.index_add_(0, seg, src)
def _pad(x, pw):
    flat = tuple(v for pair in reversed(pw) for v in pair)
    return torch.nn.functional.pad(x, flat)

kernel_name = 'recurrent_scan__ssm_conv_s4d__dense_activation_silu__prompt'

def setup_inputs():

    _w = (lambda a: (lambda t: t.to(torch.bfloat16) if t.is_floating_point() else t)(torch.as_tensor(a)))
    def _A_setup():
        Bsz, L, D, N = 1, 2048, 640, 128
        return {
            "u": _w((lambda *s: torch.randn(*s, dtype=torch.bfloat16) * 0.05)(Bsz, L, D)),
            "log_A_real": _w((lambda *s: torch.randn(*s, dtype=torch.bfloat16) * 6.4)(D, N) * 0.5),
            "A_imag": _w((lambda *s: torch.randn(*s, dtype=torch.bfloat16) * 0.2)(D, N) * 3.14),
            "C_real": _w((lambda *s: torch.randn(*s, dtype=torch.bfloat16) * 0.4)(D, N) / N ** 0.5),
            "C_imag": _w((lambda *s: torch.randn(*s, dtype=torch.bfloat16) * 0.4)(D, N) / N ** 0.5),
            "log_dt": _w((lambda *s: torch.randn(*s, dtype=torch.bfloat16) * 0.2)(D) * 0.5 - 4.0),
            "D_skip": _w((lambda *s: torch.randn(*s, dtype=torch.bfloat16) * 0.2)(D)),
        }
    _A_in = _A_setup()

    def _B_setup():
        B, S, D, F = 1, 2048, 640, 1728
        return {
            "x": _w((lambda *s: torch.randn(*s, dtype=torch.bfloat16) * 0.05)(B, S, D)),
            "w1": _w((lambda *s: torch.randn(*s, dtype=torch.bfloat16) * 0.8)(D, F) * (D ** -0.5)),
            "w2": _w((lambda *s: torch.randn(*s, dtype=torch.bfloat16) * 0.1)(F, D) * (F ** -0.5)),
        }
    _B_in = _B_setup()

    return {
        "A_u": _A_in["u"],
        "A_log_A_real": _A_in["log_A_real"],
        "A_A_imag": _A_in["A_imag"],
        "A_C_real": _A_in["C_real"],
        "A_C_imag": _A_in["C_imag"],
        "A_log_dt": _A_in["log_dt"],
        "A_D_skip": _A_in["D_skip"],
        "B_x": _B_in["x"],
        "B_w1": _B_in["w1"],
        "B_w2": _B_in["w2"],
    }

def reference(A_u, A_log_A_real, A_A_imag, A_C_real, A_C_imag, A_log_dt, A_D_skip, B_x, B_w1, B_w2):
    def _A_ref(u, log_A_real, A_imag, C_real, C_imag, log_dt, D_skip):
        L = u.shape[1]
        dt = torch.exp(log_dt)
        A = -torch.exp(log_A_real) + 1j * A_imag
        C = (C_real + 1j * C_imag) * dt[:, None]
        pos = (lambda x, dt: x.to(dt))(torch.arange(L), log_dt.dtype)
        P = torch.exp((A * dt[:, None])[:, :, None] * pos[None, None, :])
        K = 2.0 * torch.einsum("dn,dnl->dl", C, P).real
        L2 = 2 * L
        u_t = (lambda x, *d: x.permute(*d))(u, 0, 2, 1)
        Kf = (lambda x, *a, **k: torch.fft.rfft(x.float(), *a, **k))(K, L2)
        Uf = (lambda x, *a, **k: torch.fft.rfft(x.float(), *a, **k))(u_t, L2)
        y = (lambda x, *a, **k: torch.fft.irfft(x, *a, **k).to(torch.bfloat16))(Uf * Kf[None, :, :], L2)[:, :, :L]
        y = (lambda x, *d: x.permute(*d))(y, 0, 2, 1)
        return y + u * D_skip[None, None, :]

    def _B_ref(x, w1, w2):
        h = torch.einsum("bsd,df->bsf", x, w1)
        h = _silu(h)
        out = torch.einsum("bsf,fd->bsd", h, w2)
        return out

    x = A_u
    xn = _layernorm(x, axis=-1)
    s = _A_ref(xn, A_log_A_real, A_A_imag, A_C_real, A_C_imag, A_log_dt, A_D_skip)
    g = _silu(_B_ref(xn, B_w1, B_w2))
    return x + s * g
```

```python
class Asm:
    def __init__(self):
        self.lines = []
        self._lab = 0

    def __call__(self, s=""):
        for ln in s.split("\n"):
            ln = ln.strip()
            if ln:
                self.lines.append(("" if ln.endswith(":") else "    ") + ln)

    def label(self, name):
        self.lines.append(name + ":")

    def newlabel(self, base="L"):
        self._lab += 1
        return f"{base}_{self._lab}"

    def comment(self, s):
        self.lines.append("    ; " + s)

    def text(self):
        return "\n".join(self.lines) + "\n"


def vr(base, n=1):
    return f"v{base}" if n == 1 else f"v[{base}:{base + n - 1}]"


def ar(base, n=1):
    return f"a{base}" if n == 1 else f"a[{base}:{base + n - 1}]"


def sr(base, n=1):
    return f"s{base}" if n == 1 else f"s[{base}:{base + n - 1}]"


def kernel_header(a, name):
    a.lines.append(f".globl {name}")
    a.lines.append(".p2align 8")
    a.lines.append(f".type {name},@function")
    a.lines.append(f"{name}:")


def kernel_descriptor(name, vgpr, sgpr, accum, extra=()):
    out = [f".amdhsa_kernel {name}",
           f"  .amdhsa_next_free_vgpr {vgpr}",
           f"  .amdhsa_next_free_sgpr {sgpr}",
           f"  .amdhsa_accum_offset {accum}",
           "  .amdhsa_group_segment_fixed_size 0",
           "  .amdhsa_kernarg_size 104",
           "  .amdhsa_user_sgpr_count 2",
           "  .amdhsa_user_sgpr_kernarg_segment_ptr 1",
           "  .amdhsa_system_sgpr_workgroup_id_x 1"]
    out += ["  " + e for e in extra]
    out.append(".end_amdhsa_kernel")
    return "\n".join(out) + "\n"


def srd(a, s, ptr_s, nbytes, off=0):
    if off:
        a(f"s_add_u32 s{s}, s{ptr_s}, {off}")
        a(f"s_addc_u32 s{s+1}, s{ptr_s+1}, 0")
    else:
        a(f"s_mov_b32 s{s}, s{ptr_s}")
        a(f"s_mov_b32 s{s+1}, s{ptr_s+1}")
    a(f"s_mov_b32 s{s+2}, {nbytes}")
    a(f"s_mov_b32 s{s+3}, 0x00020000")
```

```python
import struct
from asmlib import Asm

KA = dict(u=0, logA=8, Aim=16, Cr=24, Ci=32, logdt=40, Dskip=48, Bx=56, w1=64, w2=72, out=80, dbg=88, ws=96)
L, D, F, N = 2048, 640, 1728, 128
WS_STATS = 0x0
WS_XNT = 0x10000
WS_H = 0x300000
WS_W2R = 0xA00000
WS_KX = 0xD00000
WS_ST = 0x1000000
SZ_U = L * D * 2
SZ_STATS = L * 8
SZ_XNT = D * L * 2
NKS = F // 32
SZ_H = 32 * NKS * 4096
SZ_W2R = 8 * NKS * 5120
KX_STRIDE = 4160
SZ_KX = D * KX_STRIDE
SZ_ST = D * L * 2
SZ_W = D * F * 2
SZ_P = D * N * 2

def fhex(x):
    return "0x%08x" % struct.unpack("<I", struct.pack("<f", x))[0]

LOG2E = 1.4426950408889634
INV2PI = 0.15915494309189535

def v(b, n=1):
    return f"v{b}" if n == 1 else f"v[{b}:{b+n-1}]"

def s(b, n=1):
    return f"s{b}" if n == 1 else f"s[{b}:{b+n-1}]"

def load_ptr(a, sreg, name):
    a(f"s_load_dwordx2 {s(sreg,2)}, s[0:1], {KA[name]}")

def srd(a, sreg, ptr, nbytes, off=0):
    if off:
        a(f"s_add_u32 {s(sreg)}, {s(ptr)}, {hex(off)}")
        a(f"s_addc_u32 {s(sreg+1)}, {s(ptr+1)}, 0")
    else:
        a(f"s_mov_b32 {s(sreg)}, {s(ptr)}")
        a(f"s_mov_b32 {s(sreg+1)}, {s(ptr+1)}")
    a(f"s_mov_b32 {s(sreg+2)}, {hex(nbytes)}")
    a(f"s_mov_b32 {s(sreg+3)}, 0x00020000")

def srd_dyn(a, sreg, ptr, nbytes, off_const, off_sreg):
    a(f"s_add_u32 {s(sreg)}, {s(ptr)}, {hex(off_const)}")
    a(f"s_addc_u32 {s(sreg+1)}, {s(ptr+1)}, 0")
    a(f"s_add_u32 {s(sreg)}, {s(sreg)}, {s(off_sreg)}")
    a(f"s_addc_u32 {s(sreg+1)}, {s(sreg+1)}, 0")
    a(f"s_mov_b32 {s(sreg+2)}, {hex(nbytes)}")
    a(f"s_mov_b32 {s(sreg+3)}, 0x00020000")

def lane_wave(a, vlane, swave, vtmp):
    a(f"v_and_b32 {v(vlane)}, 63, v0")
    a(f"v_lshrrev_b32 {v(vtmp)}, 6, v0")
    a(f"v_readfirstlane_b32 {s(swave)}, {v(vtmp)}")

def round_bf16(a, dst, src):
    a(f"v_cvt_pk_bf16_f32 {v(dst)}, {v(src)}, {v(src)}")
    a(f"v_lshlrev_b32 {v(dst)}, 16, {v(dst)}")
```

```python
import re

TRANS = ("v_exp_f32", "v_log_f32", "v_rcp_f32", "v_rsq_f32", "v_sqrt_f32", "v_sin_f32", "v_cos_f32", "v_rcp_iflag_f32")
REG = re.compile(r"\b([vsa])(\d+)\b|\b([vsa])\[(\d+):(\d+)\]|\b(vcc|exec|m0|scc)\b")

def regs_of(tok):
    out = set()
    for m in REG.finditer(tok):
        if m.group(1):
            out.add((m.group(1), int(m.group(2))))
        elif m.group(3):
            for i in range(int(m.group(4)), int(m.group(5)) + 1):
                out.add((m.group(3), i))
        else:
            out.add((m.group(6), 0))
    return out

def split_ops(s):
    ops, depth, cur = [], 0, ""
    for ch in s:
        if ch == "[": depth += 1
        if ch == "]": depth -= 1
        if ch == "," and depth == 0:
            ops.append(cur.strip()); cur = ""
        else:
            cur += ch
    if cur.strip(): ops.append(cur.strip())
    return ops

class I:
    pass

def parse(line):
    t = line.split(";")[0].strip()
    if not t or t.endswith(":") or t.startswith("."):
        return None
    parts = t.split(None, 1)
    i = I(); i.text = line; i.op = parts[0]
    op = i.op
    for suf in ("_e32", "_e64", "_dpp", "_sdwa"):
        if op.endswith(suf): op = op[: -len(suf)]
    i.base = op
    rest = parts[1] if len(parts) > 1 else ""
    ops = split_ops(rest)
    i.mods = ""
    if ops:
        last = ops[-1].split(None, 1)
        if len(last) > 1 and not last[0].startswith("-abs") :
            ops[-1] = last[0]; i.mods = last[1]
    i.ops = ops
    i.is_mfma = op.startswith("v_mfma")
    i.is_valu = op.startswith("v_") and not i.is_mfma
    i.is_trans = op in TRANS
    i.is_dpp = ("quad_perm" in rest or "row_" in rest or "wave_" in rest or i.op.endswith("_dpp"))
    i.is_vmem = op.startswith(("buffer_", "global_", "flat_"))
    i.is_ds = op.startswith("ds_")
    i.is_salu = op.startswith("s_") and not op.startswith(("s_nop", "s_waitcnt", "s_barrier", "s_endpgm", "s_branch", "s_cbranch", "s_sleep", "s_setprio"))
    i.lds_dma = i.is_vmem and re.search(r"\blds\b", rest) is not None
    i.w, i.r = set(), set()
    i.passes = 0
    R = [regs_of(o) for o in ops]
    if i.is_mfma:
        i.passes = 8 if "32x32" in op else 4
        i.w = R[0]; i.a = R[1]; i.b = R[2]; i.c = R[3]; i.r = R[1] | R[2] | R[3]
    elif i.is_valu:
        if op.startswith("v_cmp"):
            i.w = R[0]; i.r = set().union(*R[1:])
        elif op in ("v_readfirstlane_b32", "v_readlane_b32"):
            i.w = R[0]; i.r = set().union(*R[1:])
        elif op in ("v_add_co_u32", "v_sub_co_u32", "v_addc_co_u32", "v_subb_co_u32", "v_div_scale_f32", "v_mad_u64_u32"):
            i.w = R[0] | R[1]; i.r = set().union(*R[2:])
        elif op.startswith("v_permlane") and "swap" in op:
            i.w = R[0] | R[1]; i.r = R[0] | R[1]
        else:
            i.w = R[0]; i.r = set().union(*R[1:]) if len(R) > 1 else set()
            if op in ("v_fmac_f32", "v_pk_fmac_f16", "v_dot2c_f32_bf16", "v_writelane_b32", "v_mac_f32") or i.is_dpp or "op_sel" in i.mods and op.startswith("v_cvt"):
                i.r |= R[0]
            if op == "v_cndmask_b32" and len(ops) == 3:
                i.r.add(("vcc", 0))
    elif i.is_ds:
        if op.startswith(("ds_read", "ds_bpermute", "ds_permute", "ds_swizzle")):
            i.w = R[0]; i.r = set().union(*R[1:])
            if "d16" in op: i.r |= R[0]
        else:
            i.r = set().union(*R)
    elif i.is_vmem:
        if i.lds_dma:
            i.r = set().union(*R) | {("m0", 0)}
        elif "load" in op:
            i.w = R[0]; i.r = set().union(*R[1:])
        elif "atomic" in op:
            i.r = set().union(*R)
            if "sc0" in i.mods: i.w = R[0]
        else:
            i.r = set().union(*R)
            i.store_data = R[0] if op.startswith("buffer_") else R[1]
        i.wide_store = ("store" in op) and ("x4" in op or "x3" in op)
    elif i.is_salu:
        if op.startswith(("s_cmp", "s_bitcmp")):
            i.r = set().union(*R)
        elif R:
            i.w = R[0]; i.r = set().union(*R[1:]) if len(R) > 1 else set()
            if "saveexec" in op: i.w = i.w | {("exec", 0)}; i.r.add(("exec", 0))
    i.ws = 1
    if op == "s_nop": i.ws = int(ops[0], 0) + 1
    return i

def isv(s): return {x for x in s if x[0] in ("v", "a")}
def iss(s): return {x for x in s if x[0] in ("s", "vcc")}

def need(prev, cur):
    n = 0
    if prev.is_valu and not prev.base.startswith("v_readf") or prev.base in ("v_readfirstlane_b32", "v_readlane_b32"):
        pv = isv(prev.w); ps = iss(prev.w)
        if pv:
            if cur.is_mfma and pv & cur.r: n = max(n, 2)
            if cur.is_dpp and cur.is_valu and pv & cur.r: n = max(n, 2)
            if cur.base in ("v_readfirstlane_b32", "v_readlane_b32") and pv & cur.r: n = max(n, 1)
            if cur.base.startswith("v_permlane") and pv & cur.r: n = max(n, 2)
            if prev.is_trans and (cur.is_valu or cur.is_vmem or cur.is_ds) and pv & cur.r: n = max(n, 1)
            if ("op_sel" in prev.mods or prev.op.endswith("_sdwa")) and cur.is_valu and pv & (cur.r | cur.w): n = max(n, 1)
        if ps:
            if cur.is_valu and ps & cur.r: n = max(n, 4 if cur.base in ("v_readlane_b32", "v_writelane_b32") else 2)
            if cur.is_mfma and ps & cur.r: n = max(n, 2)
            if cur.is_vmem and ps & cur.r: n = max(n, 5)
            if cur.is_salu and ps & cur.r: n = max(n, 1)
    if prev.is_mfma:
        P = prev.passes
        d = prev.w
        if cur.is_mfma:
            if d & (cur.a | cur.b): n = max(n, {4: 8, 8: 12}[P])
            if d & cur.c and not (cur.c == d and cur.passes == P): n = max(n, {4: 6, 8: 10}[P])
            if d & cur.w and not (cur.c == d and cur.w == d and cur.passes == P): n = max(n, {4: 8, 8: 12}[P])
        elif cur.is_valu or cur.is_vmem or cur.is_ds:
            if d & (cur.r | cur.w): n = max(n, {4: 8, 8: 12}[P])
            if cur.is_valu and prev.c & cur.w: n = max(n, {4: 3, 8: 7}[P])
    if prev.is_vmem and getattr(prev, "wide_store", False) and (cur.is_valu or cur.is_mfma):
        if prev.store_data & cur.w: n = max(n, 2)
    if prev.is_salu and ("m0", 0) in prev.w and cur.is_vmem and cur.lds_dma: n = max(n, 1)
    return n

def fix(lines, window=24):
    out, hist = [], []
    added = 0
    for ln in lines:
        ins = parse(ln)
        if ins is None:
            out.append(ln); continue
        req = 0; dist = 0
        for p in reversed(hist):
            if dist >= window: break
            k = need(p, ins)
            if k > dist: req = max(req, k - dist)
            dist += p.ws
        while req > 0:
            k = min(req, 16)
            nop = parse(f"s_nop {k-1}")
            out.append(f"    s_nop {k-1}"); hist.append(nop); req -= k; added += k
        out.append(ln); hist.append(ins)
        if len(hist) > 64: hist = hist[-64:]
    return out, added
```

```python
from gen_common import *

CV_COPY = 4160
CV_U = 4 * CV_COPY
CV_CH = CV_U + 4608
CV_LDS = 3 * CV_CH

def role_conv(a, swg, tag, sc1=False, signal=None):
    SW, SD = 4, 5
    PWS, PDS = 40, 42
    S_XT, S_KX, S_ST = 8, 12, 16
    VL = 1
    load_ptr(a, PWS, "ws"); load_ptr(a, PDS, "Dskip")
    lane_wave(a, VL, SW, 2)
    a(f"s_and_b32 s6, {s(swg)}, 7")
    a(f"s_lshr_b32 s7, {s(swg)}, 3")
    a("s_mul_i32 s6, s6, 80")
    a("s_lshr_b32 s30, s7, 1")
    a("s_mul_i32 s30, s30, 5")
    a("s_add_u32 s6, s6, s30")
    a("s_and_b32 s7, s7, 1")
    a("s_mul_i32 s30, s7, 3")
    a("s_add_u32 s6, s6, s30")
    a(f"s_add_u32 {s(SD)}, s6, {s(SW)}")
    a("s_sub_u32 s30, 3, s7")
    lab_done = f"L_cv_done_{tag}"
    a(f"s_cmp_ge_u32 {s(SW)}, s30")
    a(f"s_cbranch_scc1 {lab_done}")
    a(f"s_lshl_b32 s31, {s(SD)}, 1")
    a("s_and_b32 s31, s31, 0xfffffffc")
    a("s_waitcnt lgkmcnt(0)")
    a(f"s_load_dword s32, {s(PDS,2)}, s31")
    srd(a, S_XT, PWS, SZ_XNT, WS_XNT); srd(a, S_KX, PWS, SZ_KX, WS_KX); srd(a, S_ST, PWS, SZ_ST, WS_ST)
    a(f"s_mul_i32 s33, {s(SW)}, {CV_CH}")
    a(f"s_mul_i32 s34, {s(SD)}, {KX_STRIDE}")
    a(f"s_lshl_b32 s35, {s(SD)}, 12")
    V16, T0, T1 = 2, 3, 4
    a(f"v_lshlrev_b32 {v(V16)}, 4, {v(VL)}")
    KR, KN, UR = 16, 32, 40
    for t in range(4):
        a(f"buffer_load_dwordx4 {v(KR+4*t,4)}, {v(V16)}, {s(S_KX,4)}, s34 offen offset:{1024*t}")
        a(f"buffer_load_dwordx2 {v(KN+2*t,2)}, {v(V16)}, {s(S_KX,4)}, s34 offen offset:{1024*t+16}")
    for t in range(4):
        a(f"buffer_load_dwordx4 {v(UR+4*t,4)}, {v(V16)}, {s(S_XT,4)}, s35 offen offset:{1024*t}")
    Z = 56
    for i in range(4):
        a(f"v_mov_b32 {v(Z+i)}, 0")
    VW = 5
    a(f"v_add_u32 {v(VW)}, s33, {v(V16)}")
    a("s_mov_b32 exec_hi, 0")
    a(f"ds_write_b128 {v(VW)}, {v(Z,4)} offset:{CV_U}")
    a("s_mov_b64 exec, 3")
    for c in range(4):
        a(f"ds_write_b128 {v(VW)}, {v(Z,4)} offset:{c*CV_COPY + 4096}")
    a("s_mov_b64 exec, -1")
    SH = 64
    for t in range(4):
        a(f"s_waitcnt vmcnt({4 + 2*(3-t)})")
        d = [KR+4*t+i for i in range(4)] + [KN+2*t, KN+2*t+1]
        al = [SH + 8*t + i for i in range(5)]
        for i in range(5):
            a(f"v_alignbit_b32 {v(al[i])}, {v(d[i+1])}, {v(d[i])}, 16")
        c2 = SH + 32 + 4*t
        for i in range(4):
            a(f"v_mov_b32 {v(c2+i)}, {v(d[i+1])}")
        c3 = SH + 48 + 4*t
        for i in range(4):
            a(f"v_mov_b32 {v(c3+i)}, {v(al[i+1])}")
        a(f"ds_write_b128 {v(VW)}, {v(KR+4*t,4)} offset:{1024*t}")
        a(f"ds_write_b128 {v(VW)}, {v(al[0],4)} offset:{CV_COPY + 1024*t}")
        a(f"ds_write_b128 {v(VW)}, {v(c2,4)} offset:{2*CV_COPY + 1024*t}")
        a(f"ds_write_b128 {v(VW)}, {v(c3,4)} offset:{3*CV_COPY + 1024*t}")
    for t in range(4):
        a(f"s_waitcnt vmcnt({3-t})")
        a(f"ds_write_b128 {v(VW)}, {v(UR+4*t,4)} offset:{CV_U + 512 + 1024*t}")
    VA, VB = 6, 7
    a(f"v_and_b32 {v(T0)}, 3, {v(VL)}")
    a(f"v_sub_u32 {v(T0)}, 3, {v(T0)}")
    a(f"v_mul_u32_u24 {v(VA)}, {CV_COPY}, {v(T0)}")
    a(f"v_and_b32 {v(T0)}, 12, {v(VL)}")
    a(f"v_lshlrev_b32 {v(T0)}, 1, {v(T0)}")
    a(f"v_sub_u32 {v(VA)}, {v(VA)}, {v(T0)}")
    a(f"v_lshrrev_b32 {v(T1)}, 4, {v(VL)}")
    a(f"v_lshl_add_u32 {v(VA)}, {v(T1)}, 4, {v(VA)}")
    a(f"s_add_u32 s36, s33, {2*2028 - 64*63}")
    a(f"v_add_u32 {v(VA)}, s36, {v(VA)}")
    a(f"v_and_b32 {v(T0)}, 15, {v(VL)}")
    a(f"v_lshlrev_b32 {v(VB)}, 5, {v(T0)}")
    a(f"v_lshl_add_u32 {v(VB)}, {v(T1)}, 4, {v(VB)}")
    a(f"s_add_u32 s36, s33, {CV_U + 512 - 32 - 64*7}")
    a(f"v_add_u32 {v(VB)}, s36, {v(VB)}")
    ACC = 16
    FA = [64, 128]; FB = [96, 160]
    a("s_waitcnt lgkmcnt(0)")
    for i in range(32):
        a(f"v_mov_b32 {v(ACC+i)}, 0")
    def reads(rho, st):
        for q in range(8):
            mu = 8*q + rho
            for hh in range(2):
                a(f"ds_read_b64 {v(FA[st]+4*q+2*hh,2)}, {v(VA)} offset:{64*(63-mu) + 8*hh}")
        for sq in range(8):
            nu = 8*sq - rho
            a(f"ds_read_b128 {v(FB[st]+4*sq,4)}, {v(VB)} offset:{64*(nu+7)}")
    reads(0, 0)
    for rho in range(8):
        st = rho & 1
        a("s_waitcnt lgkmcnt(0)")
        if rho < 7:
            reads(rho+1, st ^ 1)
        for q in range(8):
            for t in range(q, 8):
                a(f"v_mfma_f32_16x16x32_bf16 {v(ACC+4*t,4)}, {v(FA[st]+4*q,4)}, {v(FB[st]+4*(t-q),4)}, {v(ACC+4*t,4)}")
    a(f"s_and_b32 s30, {s(SD)}, 1")
    a("s_lshl_b32 s30, s30, 4")
    a("s_lshr_b32 s32, s32, s30")
    a("s_lshl_b32 s32, s32, 16")
    VU, VS = 8, 9
    a(f"v_and_b32 {v(T0)}, 15, {v(VL)}")
    a(f"v_lshlrev_b32 {v(VS)}, 5, {v(T0)}")
    a(f"v_lshrrev_b32 {v(T1)}, 4, {v(VL)}")
    a(f"v_lshl_add_u32 {v(VS)}, {v(T1)}, 3, {v(VS)}")
    a(f"s_add_u32 s36, s33, {CV_U + 512}")
    a(f"v_add_u32 {v(VU)}, s36, {v(VS)}")
    UU = 64
    for t in range(8):
        a(f"ds_read_b64 {v(UU+2*t,2)}, {v(VU)} offset:{512*t}")
    a("s_waitcnt lgkmcnt(0)")
    X, Y, O = 96, 104, 112
    for t in range(8):
        u0, u1 = UU+2*t, UU+2*t+1
        a(f"v_lshlrev_b32 {v(X)}, 16, {v(u0)}")
        a(f"v_and_b32 {v(X+1)}, 0xffff0000, {v(u0)}")
        a(f"v_lshlrev_b32 {v(X+2)}, 16, {v(u1)}")
        a(f"v_and_b32 {v(X+3)}, 0xffff0000, {v(u1)}")
        for i in range(4):
            a(f"v_mul_f32 {v(X+i)}, s32, {v(X+i)}")
        a(f"v_cvt_pk_bf16_f32 {v(X+4)}, {v(X)}, {v(X+1)}")
        a(f"v_cvt_pk_bf16_f32 {v(X+5)}, {v(X+2)}, {v(X+3)}")
        a(f"v_cvt_pk_bf16_f32 {v(Y+4)}, {v(ACC+4*t)}, {v(ACC+4*t+1)}")
        a(f"v_cvt_pk_bf16_f32 {v(Y+5)}, {v(ACC+4*t+2)}, {v(ACC+4*t+3)}")
        for (src, dst) in ((X, X), (Y, Y)):
            a(f"v_lshlrev_b32 {v(dst)}, 16, {v(src+4)}")
            a(f"v_and_b32 {v(dst+1)}, 0xffff0000, {v(src+4)}")
            a(f"v_lshlrev_b32 {v(dst+2)}, 16, {v(src+5)}")
            a(f"v_and_b32 {v(dst+3)}, 0xffff0000, {v(src+5)}")
        for i in range(4):
            a(f"v_add_f32 {v(X+i)}, {v(X+i)}, {v(Y+i)}")
        a(f"v_cvt_pk_bf16_f32 {v(O+2*t)}, {v(X)}, {v(X+1)}")
        a(f"v_cvt_pk_bf16_f32 {v(O+2*t+1)}, {v(X+2)}, {v(X+3)}")
        a(f"buffer_store_dwordx2 {v(O+2*t,2)}, {v(VS)}, {s(S_ST,4)}, s35 offen offset:{512*t}" + (" sc1" if sc1 else ""))
    a.label(lab_done)
    if signal:
        signal(a)
    a("s_endpgm")
```

```python
from gen_common import *

G1_STAGE = 16384
G1_NS = 5
G1_LDS = G1_STAGE * G1_NS
NST = 20

def role_gemm1(a, swg, tag, wait_stats=None, sc1_stats=False):
    SW = 4
    PU, PW1, PWS = 40, 42, 44
    S_U, S_W, S_ST, S_H = 8, 12, 16, 20
    SRB, SCB, SROT, SWF, SWL = 24, 25, 26, 27, 28
    SUO, SWO, SLW = 29, 30, 31
    VL = 1
    load_ptr(a, PU, "u"); load_ptr(a, PW1, "w1"); load_ptr(a, PWS, "ws")
    lane_wave(a, VL, SW, 2)
    a(f"s_and_b32 s5, {s(swg)}, 7")
    a(f"s_lshr_b32 s6, {s(swg)}, 3")
    a("s_lshr_b32 s7, s5, 1")
    a("s_and_b32 s5, s5, 1")
    a("s_and_b32 s32, s6, 3")
    a(f"s_lshl_b32 {s(SRB)}, s7, 2")
    a(f"s_add_u32 {s(SRB)}, {s(SRB)}, s32")
    a("s_lshr_b32 s32, s6, 2")
    a(f"s_mul_i32 {s(SCB)}, s5, 7")
    a(f"s_add_u32 {s(SCB)}, {s(SCB)}, s32")
    a("s_lshl_b32 s5, s5, 1")
    a("s_add_u32 s5, s5, s7")
    a("s_and_b32 s5, s5, 3")
    a(f"s_mul_i32 {s(SROT)}, s5, 5")
    a(f"s_lshr_b32 {s(SWF)}, {s(SW)}, 1")
    a(f"s_and_b32 {s(SWL)}, {s(SW)}, 1")
    VU, VW, T0, T1, T2 = 2, 3, 4, 5, 6
    a(f"v_lshrrev_b32 {v(T0)}, 2, {v(VL)}")
    a(f"s_lshl_b32 s5, {s(SRB)}, 7")
    a(f"s_lshl_b32 s6, {s(SW)}, 5")
    a("s_add_u32 s5, s5, s6")
    a(f"v_add_u32 {v(T0)}, s5, {v(T0)}")
    a(f"v_mul_u32_u24 {v(VU)}, 1280, {v(T0)}")
    a(f"v_lshrrev_b32 {v(T1)}, 4, {v(VL)}")
    a(f"v_xor_b32 {v(T1)}, {v(T1)}, {v(VL)}")
    a(f"v_and_b32 {v(T1)}, 3, {v(T1)}")
    a(f"v_lshl_add_u32 {v(VU)}, {v(T1)}, 4, {v(VU)}")
    VU2 = 7
    a(f"v_add_u32 {v(VU2)}, {16*1280}, {v(VU)}")
    a(f"v_lshrrev_b32 {v(T0)}, 4, {v(VL)}")
    a(f"v_lshlrev_b32 {v(T1)}, 2, {v(T0)}")
    a(f"v_and_b32 {v(T2)}, 15, {v(VL)}")
    a(f"v_xor_b32 {v(T1)}, {v(T1)}, {v(T2)}")
    a(f"s_lshl_b32 s5, {s(SW)}, 3")
    a(f"v_add_u32 {v(T0)}, s5, {v(T0)}")
    a(f"v_mul_u32_u24 {v(VW)}, 3456, {v(T0)}")
    a(f"v_lshl_add_u32 {v(VW)}, {v(T1)}, 4, {v(VW)}")
    a(f"s_lshl_b32 s5, {s(SCB)}, 8")
    a(f"v_add_u32 {v(VW)}, s5, {v(VW)}")
    a(f"v_lshl_add_u32 {v(T2)}, {v(T1)}, 4, s5")
    a(f"v_cmp_le_u32 vcc, 3456, {v(T2)}")
    a(f"v_mov_b32 {v(T2)}, 0x7f000000")
    a(f"v_cndmask_b32 {v(VW)}, {v(VW)}, {v(T2)}, vcc")
    VW2 = 8
    a(f"v_add_u32 {v(VW2)}, {4*3456}, {v(VW)}")
    VBU0, VBU1, VAW0, VAW1 = 9, 10, 11, 12
    a(f"v_and_b32 {v(T0)}, 31, {v(VL)}")
    a(f"s_lshl_b32 s5, {s(SWL)}, 6")
    a(f"v_add_u32 {v(T0)}, s5, {v(T0)}")
    a(f"v_lshlrev_b32 {v(VBU0)}, 6, {v(T0)}")
    a(f"v_lshrrev_b32 {v(T1)}, 5, {v(VL)}")
    a(f"v_lshrrev_b32 {v(T2)}, 2, {v(VL)}")
    a(f"v_and_b32 {v(T2)}, 3, {v(T2)}")
    a(f"v_xor_b32 {v(T2)}, {v(T1)}, {v(T2)}")
    a(f"v_xor_b32 {v(T0)}, 2, {v(T2)}")
    a(f"v_lshl_add_u32 {v(VBU1)}, {v(T0)}, 4, {v(VBU0)}")
    a(f"v_lshl_add_u32 {v(VBU0)}, {v(T2)}, 4, {v(VBU0)}")
    VH = 13
    a(f"v_lshrrev_b32 {v(VH)}, 5, {v(VL)}")
    a(f"v_and_b32 {v(T0)}, 15, {v(VL)}")
    a(f"v_lshrrev_b32 {v(T1)}, 2, {v(T0)}")
    a(f"v_lshl_add_u32 {v(T2)}, {v(VH)}, 3, {v(T1)}")
    a(f"v_lshlrev_b32 {v(VAW0)}, 8, {v(T2)}")
    a(f"v_add_u32 {v(VAW0)}, 8192, {v(VAW0)}")
    a(f"v_and_b32 {v(T2)}, 1, {v(T0)}")
    a(f"v_lshl_add_u32 {v(VAW0)}, {v(T2)}, 3, {v(VAW0)}")
    a(f"v_and_b32 {v(T0)}, 3, {v(T0)}")
    a(f"v_lshrrev_b32 {v(T0)}, 1, {v(T0)}")
    a(f"v_lshrrev_b32 {v(T2)}, 4, {v(VL)}")
    a(f"v_and_b32 {v(T2)}, 1, {v(T2)}")
    a(f"v_lshl_add_u32 {v(T0)}, {v(T2)}, 1, {v(T0)}")
    a(f"s_lshl_b32 s5, {s(SWF)}, 3")
    a(f"v_add_u32 {v(T0)}, s5, {v(T0)}")
    a(f"v_lshlrev_b32 {v(T1)}, 2, {v(T1)}")
    a(f"v_xor_b32 {v(T2)}, {v(T0)}, {v(T1)}")
    a(f"v_xor_b32 {v(T0)}, 4, {v(T2)}")
    a(f"v_lshl_add_u32 {v(VAW1)}, {v(T0)}, 4, {v(VAW0)}")
    a(f"v_lshl_add_u32 {v(VAW0)}, {v(T2)}, 4, {v(VAW0)}")
    HI = {VBU0: 14, VBU1: 15, VAW0: 16, VAW1: 17}
    for lo, hi in HI.items():
        a(f"v_add_u32 {v(hi)}, 0x10000, {v(lo)}")
    a("s_waitcnt lgkmcnt(0)")
    srd(a, S_U, PU, SZ_U); srd(a, S_W, PW1, SZ_W)
    srd(a, S_ST, PWS, SZ_STATS, WS_STATS); srd(a, S_H, PWS, SZ_H, WS_H)
    a(f"s_lshl_b32 {s(SLW)}, {s(SW)}, 11")
    ACC, ACS, ONE = 32, 96, 112
    FA, FB = 116, 148
    FA = [116, 132]; FB = [124, 140]
    for i in range(80):
        a(f"v_mov_b32 {v(ACC+i)}, 0")
    for i in range(4):
        a(f"v_mov_b32 {v(ONE+i)}, 0x3f803f80")
    SST = 33
    a(f"s_mov_b32 {s(SST)}, {s(SROT)}")
    def dma(slot):
        a(f"s_lshl_b32 {s(SUO)}, {s(SST)}, 6")
        a(f"s_mul_i32 {s(SWO)}, {s(SST)}, {32*3456}")
        a(f"s_add_u32 m0, {s(SLW)}, {slot*G1_STAGE}")
        a(f"buffer_load_dwordx4 {v(VU)}, {s(S_U,4)}, {s(SUO)} offen lds")
        a(f"s_add_u32 m0, {s(SLW)}, {slot*G1_STAGE + 1024}")
        a(f"buffer_load_dwordx4 {v(VU2)}, {s(S_U,4)}, {s(SUO)} offen lds")
        a(f"s_add_u32 m0, {s(SLW)}, {slot*G1_STAGE + 8192}")
        a(f"buffer_load_dwordx4 {v(VW)}, {s(S_W,4)}, {s(SWO)} offen lds")
        a(f"s_add_u32 m0, {s(SLW)}, {slot*G1_STAGE + 8192 + 1024}")
        a(f"buffer_load_dwordx4 {v(VW2)}, {s(S_W,4)}, {s(SWO)} offen lds")
        a(f"s_add_u32 {s(SST)}, {s(SST)}, 1")
        a(f"s_cmp_eq_u32 {s(SST)}, {NST}")
        a(f"s_cselect_b32 {s(SST)}, 0, {s(SST)}")
    def frag_reads(slot, sig, st):
        base = slot*G1_STAGE
        hi = base >= 0x10000
        base &= 0xffff
        for ft in range(2):
            ad = VAW0 if ft == 0 else VAW1
            if hi: ad = HI[ad]
            for rho in range(2):
                a(f"ds_read_b64_tr_b16 {v(FA[st]+4*ft+2*rho,2)}, {v(ad)} offset:{base + 4096*sig + 1024*rho}")
        ad = VBU0 if sig == 0 else VBU1
        if hi: ad = HI[ad]
        for lt in range(2):
            a(f"ds_read_b128 {v(FB[st]+4*lt,4)}, {v(ad)} offset:{base + 2048*lt}")
    def mfmas(st):
        for ft in range(2):
            for lt in range(2):
                d = ACC + 16*(2*ft+lt)
                a(f"v_mfma_f32_32x32x16_bf16 {v(d,16)}, {v(FA[st]+4*ft,4)}, {v(FB[st]+4*lt,4)}, {v(d,16)}")
    def csum(st):
        l0, l1 = a.newlabel("L_cs"), a.newlabel("L_cs")
        a(f"s_cmp_eq_u32 {s(SWL)}, 0")
        a(f"s_cbranch_scc0 {l0}")
        a(f"v_mfma_f32_32x32x16_bf16 {v(ACS,16)}, {v(FA[st],4)}, {v(ONE,4)}, {v(ACS,16)}")
        a(f"s_branch {l1}")
        a.label(l0)
        a(f"v_mfma_f32_32x32x16_bf16 {v(ACS,16)}, {v(FA[st]+4,4)}, {v(ONE,4)}, {v(ACS,16)}")
        a.label(l1)
    for i in range(G1_NS - 1):
        dma(i)
    for st in range(NST):
        slot = st % G1_NS
        inflight = min(NST - 1 - st, G1_NS - 2)
        a(f"s_waitcnt vmcnt({4*inflight})")
        a("s_barrier")
        if st + G1_NS - 1 < NST:
            dma((st + G1_NS - 1) % G1_NS)
        frag_reads(slot, 0, 0)
        frag_reads(slot, 1, 1)
        a("s_waitcnt lgkmcnt(6)")
        mfmas(0); csum(0)
        a("s_waitcnt lgkmcnt(0)")
        mfmas(1); csum(1)
    a("s_barrier")
    a(f"s_lshl_b32 s5, {s(SW)}, 7")
    a(f"v_lshlrev_b32 {v(T0)}, 4, {v(VH)}")
    a(f"v_add_u32 {v(T0)}, s5, {v(T0)}")
    a("s_mov_b32 exec_lo, 1")
    a("s_mov_b32 exec_hi, 1")
    for j in range(4):
        a(f"ds_write_b128 {v(T0)}, {v(ACS+4*j,4)} offset:{32*j}")
    a("s_mov_b64 exec, -1")
    if wait_stats:
        wait_stats(a, SRB)
    STAT = 116
    a(f"v_and_b32 {v(T1)}, 31, {v(VL)}")
    a(f"s_lshl_b32 s5, {s(SRB)}, 7")
    a(f"s_lshl_b32 s6, {s(SWL)}, 6")
    a("s_add_u32 s5, s5, s6")
    a(f"v_add_u32 {v(T1)}, s5, {v(T1)}")
    a(f"v_lshlrev_b32 {v(T2)}, 3, {v(T1)}")
    fl = " sc1" if sc1_stats else ""
    a(f"buffer_load_dwordx2 {v(STAT,2)}, {v(T2)}, {s(S_ST,4)}, 0 offen{fl}")
    a(f"buffer_load_dwordx2 {v(STAT+2,2)}, {v(T2)}, {s(S_ST,4)}, 0 offen offset:256{fl}")
    a("s_waitcnt lgkmcnt(0)")
    a("s_barrier")
    CS = 120
    a(f"s_lshl_b32 s5, {s(SWF)}, 8")
    a(f"v_lshlrev_b32 {v(T0)}, 4, {v(VH)}")
    a(f"v_add_u32 {v(T0)}, s5, {v(T0)}")
    for ft in range(2):
        for j in range(4):
            a(f"ds_read_b128 {v(CS+16*ft+4*j,4)}, {v(T0)} offset:{128*ft + 32*j}")
    VS = 152
    a(f"v_lshrrev_b32 {v(T0)}, 4, {v(T1)}")
    a(f"v_and_b32 {v(T0)}, 3, {v(T0)}")
    a(f"v_lshlrev_b32 {v(VS)}, 10, {v(T0)}")
    a(f"v_and_b32 {v(T0)}, 15, {v(T1)}")
    a(f"v_lshl_add_u32 {v(VS)}, {v(T0)}, 4, {v(VS)}")
    a(f"v_lshl_add_u32 {v(VS)}, {v(VH)}, 9, {v(VS)}")
    a(f"s_lshl_b32 s5, {s(SRB)}, 1")
    a(f"s_add_u32 s5, s5, {s(SWL)}")
    a(f"s_mul_i32 s5, s5, {NKS}")
    a(f"s_lshl_b32 s6, {s(SCB)}, 2")
    a("s_add_u32 s5, s5, s6")
    a(f"s_lshl_b32 s6, {s(SWF)}, 1")
    a("s_add_u32 s5, s5, s6")
    a("s_lshl_b32 s5, s5, 12")
    a(f"s_lshl_b32 s6, {s(SCB)}, 1")
    a(f"s_add_u32 s6, s6, {s(SWF)}")
    lab_end = f"L_g1_end_{tag}"
    a("s_waitcnt vmcnt(0) lgkmcnt(0)")
    a(f"s_cmp_ge_u32 s6, {F//64}")
    a(f"s_cbranch_scc1 {lab_end}")
    X, E, PK = 160, 176, 192
    for ft in range(2):
        for lt in range(2):
            acc = ACC + 16*(2*ft+lt); m, rs = STAT + 2*lt, STAT + 2*lt + 1
            for r in range(16):
                a(f"v_fma_f32 {v(X+r)}, -{v(m)}, {v(CS+16*ft+r)}, {v(acc+r)}")
            for r in range(16):
                a(f"v_mul_f32 {v(X+r)}, {v(X+r)}, {v(rs)}")
            for r in range(16):
                a(f"v_mul_f32 {v(E+r)}, {fhex(-LOG2E)}, {v(X+r)}")
            for r in range(16):
                a(f"v_exp_f32 {v(E+r)}, {v(E+r)}")
            for r in range(16):
                a(f"v_add_f32 {v(E+r)}, 1.0, {v(E+r)}")
            for r in range(16):
                a(f"v_rcp_f32 {v(E+r)}, {v(E+r)}")
            for r in range(16):
                a(f"v_mul_f32 {v(X+r)}, {v(X+r)}, {v(E+r)}")
            pk = PK + 8*((2*ft+lt) & 1)
            for r in range(8):
                a(f"v_cvt_pk_bf16_f32 {v(pk+r)}, {v(X+2*r)}, {v(X+2*r+1)}")
            a(f"s_add_u32 s7, s5, {ft*4096 + lt*2048}")
            for sig in range(2):
                a(f"buffer_store_dwordx4 {v(pk+4*sig,4)}, {v(VS)}, {s(S_H,4)}, s7 offen offset:{256*sig}")
    a.label(lab_end)
    a("s_endpgm")
```

```python
from gen_common import *

G2_DEPTH = 3
G2_STEPS = 14
G2_RED = 15 * 1024
G2_T = 4 * G2_RED
G2_TSTRIDE = 176
G2_LDS = G2_T + 64 * G2_TSTRIDE

def role_gemm2(a, swg, tag, wait_s=None, sc1=False):
    SW = 4
    PWS, PU, PO = 40, 42, 44
    S_H, S_B, S_S, S_U, S_O = 8, 12, 16, 20, 24
    SRB, SCB = 28, 29
    VL = 1
    load_ptr(a, PWS, "ws"); load_ptr(a, PU, "u"); load_ptr(a, PO, "out")
    lane_wave(a, VL, SW, 2)
    a(f"s_and_b32 s5, {s(swg)}, 7")
    a(f"s_lshr_b32 s6, {s(swg)}, 3")
    a("s_lshr_b32 s7, s5, 1")
    a(f"s_lshl_b32 {s(SRB)}, s7, 3")
    a("s_and_b32 s7, s6, 7")
    a(f"s_add_u32 {s(SRB)}, {s(SRB)}, s7")
    a("s_and_b32 s5, s5, 1")
    a(f"s_lshl_b32 {s(SCB)}, s5, 2")
    a("s_lshr_b32 s7, s6, 3")
    a(f"s_add_u32 {s(SCB)}, {s(SCB)}, s7")
    a(f"s_mul_i32 s30, {s(SRB)}, {NKS*4096}")
    a(f"s_mul_i32 s31, {s(SCB)}, {NKS*5120}")
    a("s_waitcnt lgkmcnt(0)")
    srd_dyn(a, S_H, PWS, NKS*4096, WS_H, 30)
    srd_dyn(a, S_B, PWS, NKS*5120, WS_W2R, 31)
    srd(a, S_S, PWS, SZ_ST, WS_ST); srd(a, S_U, PU, SZ_U); srd(a, S_O, PO, SZ_U)
    V16, V16B, T0, T1, T2 = 2, 3, 4, 5, 6
    a(f"v_lshlrev_b32 {v(V16)}, 4, {v(VL)}")
    a(f"v_add_u32 {v(V16B)}, 4096, {v(V16)}")
    SHO, SBO = 32, 33
    a(f"s_mul_i32 {s(SHO)}, {s(SW)}, {G2_STEPS*4096}")
    a(f"s_mul_i32 {s(SBO)}, {s(SW)}, {G2_STEPS*5120}")
    ACC = 16
    BUF = 96
    for i in range(80):
        a(f"v_mov_b32 {v(ACC+i)}, 0")
    def loads(step):
        b = BUF + 36*(step % G2_DEPTH)
        for lt in range(4):
            a(f"buffer_load_dwordx4 {v(b+4*lt,4)}, {v(V16)}, {s(S_H,4)}, {s(SHO)} offen offset:{1024*lt}")
        for dt in range(5):
            if dt < 4:
                a(f"buffer_load_dwordx4 {v(b+16+4*dt,4)}, {v(V16)}, {s(S_B,4)}, {s(SBO)} offen offset:{1024*dt}")
            else:
                a(f"buffer_load_dwordx4 {v(b+16+4*dt,4)}, {v(V16B)}, {s(S_B,4)}, {s(SBO)} offen")
        a(f"s_add_u32 {s(SHO)}, {s(SHO)}, 4096")
        a(f"s_add_u32 {s(SBO)}, {s(SBO)}, 5120")
    for i in range(G2_DEPTH - 1):
        loads(i)
    for st in range(G2_STEPS):
        if st + G2_DEPTH - 1 < G2_STEPS:
            loads(st + G2_DEPTH - 1)
        rem = min(G2_STEPS - 1 - st, G2_DEPTH - 1)
        a(f"s_waitcnt vmcnt({9*rem})")
        b = BUF + 36*(st % G2_DEPTH)
        for lt in range(4):
            for dt in range(5):
                d = ACC + 4*(5*lt+dt)
                a(f"v_mfma_f32_16x16x32_bf16 {v(d,4)}, {v(b+4*lt,4)}, {v(b+16+4*dt,4)}, {v(d,4)}")
    VW = 7
    a(f"s_mul_i32 s5, {s(SW)}, {G2_RED}")
    a(f"v_add_u32 {v(VW)}, s5, {v(V16)}")
    for own in range(4):
        lab = a.newlabel("L_g2_pub")
        a(f"s_cmp_lg_u32 {s(SW)}, {own}")
        a(f"s_cbranch_scc1 {lab}")
        slot = 0
        for lt in range(4):
            if lt == own: continue
            for dt in range(5):
                a(f"ds_write_b128 {v(VW)}, {v(ACC+4*(5*lt+dt),4)} offset:{1024*slot}")
                slot += 1
        if own:
            a("s_waitcnt lgkmcnt(0)")
            for i in range(20):
                a(f"v_mov_b32 {v(ACC+i)}, {v(ACC+20*own+i)}")
        a.label(lab)
    if wait_s:
        wait_s(a, SCB)
    SV = 96
    a(f"v_and_b32 {v(T0)}, 15, {v(VL)}")
    a(f"s_mul_i32 s5, {s(SCB)}, 80")
    a(f"v_add_u32 {v(T0)}, s5, {v(T0)}")
    a(f"v_lshlrev_b32 {v(T0)}, 12, {v(T0)}")
    a(f"v_lshrrev_b32 {v(T1)}, 4, {v(VL)}")
    a(f"v_lshl_add_u32 {v(T0)}, {v(T1)}, 3, {v(T0)}")
    a(f"s_lshl_b32 s5, {s(SRB)}, 7")
    a(f"s_lshl_b32 s6, {s(SW)}, 5")
    a("s_add_u32 s5, s5, s6")
    fl = " sc1" if sc1 else ""
    for dt in range(5):
        a(f"s_add_u32 s6, s5, {dt << 16}")
        a(f"buffer_load_dwordx2 {v(SV+2*dt,2)}, {v(T0)}, {s(S_S,4)}, s6 offen{fl}")
    XR = 112
    RO, RL = 124, 128
    for k in range(3):
        a(f"v_add_u32 {v(T0)}, {256*k}, v0")
        a(f"v_mul_u32_u24 {v(T1)}, 6554, {v(T0)}")
        a(f"v_lshrrev_b32 {v(T1)}, 16, {v(T1)}")
        a(f"v_mul_u32_u24 {v(T2)}, 10, {v(T1)}")
        a(f"v_sub_u32 {v(T2)}, {v(T0)}, {v(T2)}")
        a(f"v_mul_u32_u24 {v(RL+k)}, {G2_TSTRIDE}, {v(T1)}")
        a(f"v_lshl_add_u32 {v(RL+k)}, {v(T2)}, 4, {v(RL+k)}")
        a(f"s_lshl_b32 s5, {s(SRB)}, 6")
        a(f"v_add_u32 {v(T1)}, s5, {v(T1)}")
        a(f"v_mul_u32_u24 {v(RO+k)}, 1280, {v(T1)}")
        a(f"v_lshl_add_u32 {v(RO+k)}, {v(T2)}, 4, {v(RO+k)}")
        a(f"s_mul_i32 s5, {s(SCB)}, 160")
        a(f"v_add_u32 {v(RO+k)}, s5, {v(RO+k)}")
        if k == 2:
            a(f"v_cmp_gt_u32 vcc, 640, {v(T0)}")
            a(f"v_mov_b32 {v(T2)}, 0x7f000000")
            a(f"v_cndmask_b32 {v(RO+k)}, {v(T2)}, {v(RO+k)}, vcc")
            a(f"v_mov_b32 {v(T2)}, 0")
            a(f"v_cndmask_b32 {v(RL+k)}, {v(T2)}, {v(RL+k)}, vcc")
        a(f"buffer_load_dwordx4 {v(XR+4*k,4)}, {v(RO+k)}, {s(S_U,4)}, 0 offen")
    a("s_waitcnt lgkmcnt(0)")
    a("s_barrier")
    PR = 136
    for own in range(4):
        lab = a.newlabel("L_g2_red")
        a(f"s_cmp_lg_u32 {s(SW)}, {own}")
        a(f"s_cbranch_scc1 {lab}")
        n = 0
        for src in range(4):
            if src == own: continue
            pos = own if own < src else own - 1
            for dt in range(5):
                a(f"ds_read_b128 {v(PR+4*(5*n+dt),4)}, {v(V16)} offset:{src*G2_RED + 1024*(5*pos+dt)}")
            n += 1
        a.label(lab)
    a("s_waitcnt lgkmcnt(0)")
    for n in range(3):
        for i in range(20):
            a(f"v_add_f32 {v(ACC+i)}, {v(ACC+i)}, {v(PR+20*n+i)}")
    E = 40
    for i in range(0, 20, 2):
        a(f"v_cvt_pk_bf16_f32 {v(E+i)}, {v(ACC+i)}, {v(ACC+i+1)}")
        a(f"v_lshlrev_b32 {v(ACC+i)}, 16, {v(E+i)}")
        a(f"v_and_b32 {v(ACC+i+1)}, 0xffff0000, {v(E+i)}")
    for i in range(20):
        a(f"v_mul_f32 {v(E+i)}, {fhex(-LOG2E)}, {v(ACC+i)}")
    for i in range(20):
        a(f"v_exp_f32 {v(E+i)}, {v(E+i)}")
    for i in range(20):
        a(f"v_add_f32 {v(E+i)}, 1.0, {v(E+i)}")
    for i in range(20):
        a(f"v_rcp_f32 {v(E+i)}, {v(E+i)}")
    for i in range(20):
        a(f"v_mul_f32 {v(ACC+i)}, {v(ACC+i)}, {v(E+i)}")
    for i in range(0, 20, 2):
        a(f"v_cvt_pk_bf16_f32 {v(E+i)}, {v(ACC+i)}, {v(ACC+i+1)}")
        a(f"v_lshlrev_b32 {v(ACC+i)}, 16, {v(E+i)}")
        a(f"v_and_b32 {v(ACC+i+1)}, 0xffff0000, {v(E+i)}")
    a("s_waitcnt vmcnt(3)")
    VT = 60
    a(f"v_lshrrev_b32 {v(T1)}, 4, {v(VL)}")
    a(f"v_lshlrev_b32 {v(T1)}, 2, {v(T1)}")
    a(f"s_lshl_b32 s5, {s(SW)}, 4")
    a(f"v_add_u32 {v(T1)}, s5, {v(T1)}")
    a(f"v_mul_u32_u24 {v(VT)}, {G2_TSTRIDE}, {v(T1)}")
    a(f"v_and_b32 {v(T0)}, 15, {v(VL)}")
    a(f"v_lshl_add_u32 {v(VT)}, {v(T0)}, 1, {v(VT)}")
    a(f"v_add_u32 {v(VT)}, {G2_T}, {v(VT)}")
    for dt in range(5):
        s0, s1 = SV+2*dt, SV+2*dt+1
        a(f"v_lshlrev_b32 {v(E)}, 16, {v(s0)}")
        a(f"v_and_b32 {v(E+1)}, 0xffff0000, {v(s0)}")
        a(f"v_lshlrev_b32 {v(E+2)}, 16, {v(s1)}")
        a(f"v_and_b32 {v(E+3)}, 0xffff0000, {v(s1)}")
        for i in range(4):
            a(f"v_mul_f32 {v(E+i)}, {v(E+i)}, {v(ACC+4*dt+i)}")
        a(f"v_cvt_pk_bf16_f32 {v(E+4+2*(dt&1))}, {v(E)}, {v(E+1)}")
        a(f"v_cvt_pk_bf16_f32 {v(E+5+2*(dt&1))}, {v(E+2)}, {v(E+3)}")
        for i in range(4):
            op = "ds_write_b16" if i % 2 == 0 else "ds_write_b16_d16_hi"
            a(f"{op} {v(VT)}, {v(E+4+2*(dt&1)+i//2)} offset:{G2_TSTRIDE*i + 32*dt}")
    a("s_waitcnt vmcnt(0) lgkmcnt(0)")
    a("s_barrier")
    TT = 64
    for k in range(3):
        a(f"ds_read_b128 {v(TT+4*k,4)}, {v(RL+k)} offset:{G2_T}")
    for k in range(3):
        a(f"s_waitcnt lgkmcnt({2-k})")
        for e in range(4):
            x, t = XR+4*k+e, TT+4*k+e
            a(f"v_lshlrev_b32 {v(E)}, 16, {v(x)}")
            a(f"v_and_b32 {v(E+1)}, 0xffff0000, {v(x)}")
            a(f"v_lshlrev_b32 {v(E+2)}, 16, {v(t)}")
            a(f"v_and_b32 {v(E+3)}, 0xffff0000, {v(t)}")
            a(f"v_add_f32 {v(E)}, {v(E)}, {v(E+2)}")
            a(f"v_add_f32 {v(E+1)}, {v(E+1)}, {v(E+3)}")
            a(f"v_cvt_pk_bf16_f32 {v(t)}, {v(E)}, {v(E+1)}")
        a(f"buffer_store_dwordx4 {v(TT+4*k,4)}, {v(RO+k)}, {s(S_O,4)}, 0 offen")
    a("s_endpgm")
```

```python
from gen_common import *

KG_WAVE_LDS = 8192
KG_TAB = 6144

def csq(a, dr, di, sr_, si, t):
    assert di != sr_
    a(f"v_mul_f32 {v(t)}, {v(si)}, {v(si)}")
    a(f"v_mul_f32_e64 {v(di)}, {v(sr_)}, {v(si)} mul:2")
    a(f"v_fma_f32 {v(dr)}, {v(sr_)}, {v(sr_)}, -{v(t)}")

def cmul(a, dr, di, ar, ai, br, bi, neg_im=False):
    a(f"v_mul_f32 {v(dr)}, {v(ar)}, {v(br)}")
    if neg_im:
        a(f"v_mul_f32_e64 {v(di)}, -{v(ar)}, {v(bi)}")
        a(f"v_fma_f32 {v(dr)}, -{v(ai)}, {v(bi)}, {v(dr)}")
        a(f"v_fma_f32 {v(di)}, -{v(ai)}, {v(br)}, {v(di)}")
    else:
        a(f"v_mul_f32 {v(di)}, {v(ar)}, {v(bi)}")
        a(f"v_fma_f32 {v(dr)}, -{v(ai)}, {v(bi)}, {v(dr)}")
        a(f"v_fma_f32 {v(di)}, {v(ai)}, {v(br)}, {v(di)}")

def role_kgen(a, swg, tag):
    SW, SD = 4, 5
    PLA, PAI, PCR, PCI, PDT, PWS = 40, 42, 44, 46, 48, 50
    S_LA, S_AI, S_CR, S_CI, S_KX = 8, 12, 16, 20, 24
    VL = 1
    for p, n in ((PLA, "logA"), (PAI, "Aim"), (PCR, "Cr"), (PCI, "Ci"), (PDT, "logdt"), (PWS, "ws")):
        load_ptr(a, p, n)
    lane_wave(a, VL, SW, 2)
    a(f"s_lshl_b32 {s(SD)}, {s(swg)}, 2")
    a(f"s_add_u32 {s(SD)}, {s(SD)}, {s(SW)}")
    a(f"s_lshl_b32 s6, {s(SD)}, 1")
    a("s_and_b32 s6, s6, 0xfffffffc")
    a("s_waitcnt lgkmcnt(0)")
    a(f"s_load_dword s7, {s(PDT,2)}, s6")
    srd(a, S_LA, PLA, SZ_P); srd(a, S_AI, PAI, SZ_P); srd(a, S_CR, PCR, SZ_P); srd(a, S_CI, PCI, SZ_P)
    srd(a, S_KX, PWS, SZ_KX, WS_KX)
    a(f"s_lshl_b32 s28, {s(SD)}, 8")
    a(f"v_lshlrev_b32 v2, 2, {v(VL)}")
    RLA, RAI, RCR, RCI = 4, 5, 6, 7
    a(f"buffer_load_dword {v(RLA)}, v2, {s(S_LA,4)}, s28 offen")
    a(f"buffer_load_dword {v(RAI)}, v2, {s(S_AI,4)}, s28 offen")
    a(f"buffer_load_dword {v(RCR)}, v2, {s(S_CR,4)}, s28 offen")
    a(f"buffer_load_dword {v(RCI)}, v2, {s(S_CI,4)}, s28 offen")
    a(f"s_mul_i32 s29, {s(SW)}, {KG_WAVE_LDS}")
    a("s_waitcnt lgkmcnt(0)")
    a(f"s_and_b32 s30, {s(SD)}, 1")
    a("s_lshl_b32 s30, s30, 4")
    a("s_lshr_b32 s7, s7, s30")
    a("s_lshl_b32 s7, s7, 16")
    DT, T = 8, 9
    a(f"v_mov_b32 {v(DT)}, s7")
    a(f"v_mul_f32 {v(DT)}, {fhex(LOG2E)}, {v(DT)}")
    a(f"v_exp_f32 {v(DT)}, {v(DT)}")
    round_bf16(a, DT, DT)
    DT2 = 10
    a(f"v_add_f32 {v(DT2)}, {v(DT)}, {v(DT)}")
    K2048 = 11
    VTA = 12
    a(f"v_mul_u32_u24 {v(VTA)}, 96, {v(VL)}")
    a(f"v_add_u32 {v(VTA)}, s29, {v(VTA)}")
    a("s_waitcnt vmcnt(0)")
    for hi in range(2):
        E = 16 + 12*hi
        X = 48
        def unpack(dst, src):
            if hi: a(f"v_and_b32 {v(dst)}, 0xffff0000, {v(src)}")
            else:  a(f"v_lshlrev_b32 {v(dst)}, 16, {v(src)}")
        unpack(X, RLA)
        a(f"v_mul_f32 {v(X)}, {fhex(LOG2E)}, {v(X)}")
        a(f"v_exp_f32 {v(X)}, {v(X)}")
        round_bf16(a, X, X)
        a(f"v_mul_f32_e64 {v(X)}, -{v(X)}, {v(DT)}")
        a(f"v_mul_f32 {v(E)}, {fhex(LOG2E)}, {v(X)}")
        unpack(X, RAI)
        a(f"v_mul_f32 {v(X)}, {v(X)}, {v(DT)}")
        a(f"v_mul_f32 {v(X)}, {fhex(INV2PI)}, {v(X)}")
        a(f"v_rndne_f32 {v(X+1)}, {v(X)}")
        a(f"v_sub_f32 {v(E+1)}, {v(X)}, {v(X+1)}")
        unpack(X, RCR); a(f"v_mul_f32 {v(E+2)}, {v(X)}, {v(DT2)}")
        unpack(X, RCI); a(f"v_mul_f32 {v(E+3)}, {v(X)}, {v(DT2)}")
        a(f"v_mul_f32 {v(X)}, 0x43800000, {v(E)}")
        a(f"v_exp_f32 {v(X)}, {v(X)}")
        a(f"v_mul_f32 {v(X+1)}, 0x43800000, {v(E+1)}")
        a(f"v_rndne_f32 {v(X+2)}, {v(X+1)}")
        a(f"v_sub_f32 {v(X+1)}, {v(X+1)}, {v(X+2)}")
        a(f"v_cos_f32 {v(X+2)}, {v(X+1)}")
        a(f"v_sin_f32 {v(X+3)}, {v(X+1)}")
        WR, WI, TT = X+4, X+5, X+6
        a(f"v_mul_f32 {v(WR)}, {v(X)}, {v(X+2)}")
        a(f"v_mul_f32 {v(WI)}, {v(X)}, {v(X+3)}")
        cmul(a, E+4, E+5, E+2, E+3, WR, WI)
        csq(a, WR, WI, WR, WI, TT)
        cmul(a, E+6, E+7, E+2, E+3, WR, WI)
        csq(a, WR, WI, WR, WI, TT)
        cmul(a, E+8, E+9, E+2, E+3, WR, WI)
        csq(a, WR, WI, WR, WI, TT)
        if hi == 0:
            a(f"v_mul_f32 {v(K2048)}, {v(E+2)}, {v(WR)}")
        else:
            a(f"v_fmac_f32 {v(K2048)}, {v(E+2)}, {v(WR)}")
        a(f"v_fma_f32 {v(K2048)}, -{v(E+3)}, {v(WI)}, {v(K2048)}")
        a(f"v_mov_b32 {v(E+10)}, 0")
        a(f"v_mov_b32 {v(E+11)}, 0")
        for q in range(3):
            a(f"ds_write_b128 {v(VTA)}, {v(E+4*q,4)} offset:{48*hi + 16*q}")
    for m in ("quad_perm:[1,0,3,2]", "quad_perm:[2,3,0,1]", "row_half_mirror", "row_mirror"):
        a(f"v_add_f32_dpp {v(K2048)}, {v(K2048)}, {v(K2048)} {m} row_mask:0xf bank_mask:0xf")
    for q in range(4):
        a(f"v_readlane_b32 s{32+q}, {v(K2048)}, {16*q}")
    a(f"v_mov_b32 {v(K2048)}, s32")
    for q in range(1, 4):
        a(f"v_add_f32 {v(K2048)}, s{32+q}, {v(K2048)}")
    FI, VP = 13, 14
    a(f"v_and_b32 {v(T)}, 15, {v(VL)}")
    a(f"v_cvt_f32_u32 {v(FI)}, {v(T)}")
    a(f"v_lshrrev_b32 {v(T)}, 4, {v(VL)}")
    a(f"v_mul_u32_u24 {v(VP)}, 192, {v(T)}")
    a(f"v_add_u32 {v(VP)}, s29, {v(VP)}")
    P0 = 64
    VV = 160
    TMP = 168
    AT = 184
    BT = 200
    ACC = 208
    for i in range(16):
        a(f"v_mov_b32 {v(ACC+i)}, 0")
    def reads(ks):
        b = P0 + 48*(ks & 1)
        for e in range(4):
            for q in range(3):
                if q < 2:
                    a(f"ds_read_b128 {v(b+12*e+4*q,4)}, {v(VP)} offset:{768*ks + 48*e + 16*q}")
                else:
                    a(f"ds_read_b64 {v(b+12*e+8,2)}, {v(VP)} offset:{768*ks + 48*e + 32}")
    a("s_waitcnt lgkmcnt(0)")
    reads(0)
    for ks in range(8):
        if ks < 7:
            reads(ks+1)
            a("s_waitcnt lgkmcnt(12)")
        else:
            a("s_waitcnt lgkmcnt(0)")
        b = P0 + 48*(ks & 1)
        E4 = range(4)
        def P(e, k): return b + 12*e + k
        def VR(e): return VV + 2*e
        def VI(e): return VV + 2*e + 1
        def TM(e, k): return TMP + 4*e + k
        for e in E4:
            a(f"v_mul_f32 {v(TM(e,0))}, {v(P(e,0))}, {v(FI)}")
            a(f"v_mul_f32 {v(TM(e,1))}, {v(P(e,1))}, {v(FI)}")
        for e in E4:
            a(f"v_exp_f32 {v(TM(e,0))}, {v(TM(e,0))}")
            a(f"v_cos_f32 {v(TM(e,2))}, {v(TM(e,1))}")
            a(f"v_sin_f32 {v(TM(e,3))}, {v(TM(e,1))}")
        for e in E4:
            a(f"v_mul_f32 {v(VR(e))}, {v(TM(e,0))}, {v(TM(e,2))}")
            a(f"v_mul_f32 {v(VI(e))}, {v(TM(e,0))}, {v(TM(e,3))}")
        for e in E4:
            a(f"v_cvt_pk_bf16_f32 {v(BT+e)}, {v(VR(e))}, {v(VI(e))}")
        def sq_all():
            for e in E4:
                a(f"v_mul_f32 {v(TM(e,0))}, {v(VI(e))}, {v(VI(e))}")
                a(f"v_mul_f32_e64 {v(VI(e))}, {v(VR(e))}, {v(VI(e))} mul:2")
                a(f"v_fma_f32 {v(VR(e))}, {v(VR(e))}, {v(VR(e))}, -{v(TM(e,0))}")
        def atile(t, k):
            for e in E4:
                cmul(a, TM(e,0), TM(e,1), P(e,k), P(e,k+1), VR(e), VI(e), neg_im=True)
                a(f"v_cvt_pk_bf16_f32 {v(AT+4*t+e)}, {v(TM(e,0))}, {v(TM(e,1))}")
        sq_all(); sq_all()
        for e in E4:
            a(f"v_cvt_pk_bf16_f32 {v(BT+4+e)}, {v(VR(e))}, {v(VI(e))}")
        sq_all(); sq_all()
        atile(0, 2); atile(1, 4)
        a(f"v_mfma_f32_16x16x32_bf16 {v(ACC,4)}, {v(AT,4)}, {v(BT,4)}, {v(ACC,4)}")
        sq_all()
        a(f"v_mfma_f32_16x16x32_bf16 {v(ACC+4,4)}, {v(AT+4,4)}, {v(BT,4)}, {v(ACC+4,4)}")
        sq_all()
        atile(2, 6); atile(3, 8)
        a(f"v_mfma_f32_16x16x32_bf16 {v(ACC+8,4)}, {v(AT+8,4)}, {v(BT+4,4)}, {v(ACC+8,4)}")
        a(f"v_mfma_f32_16x16x32_bf16 {v(ACC+12,4)}, {v(AT+12,4)}, {v(BT+4,4)}, {v(ACC+12,4)}")
    B0, B1, X = 16, 17, 20
    a(f"v_lshrrev_b32 {v(T)}, 4, {v(VL)}")
    a(f"v_and_b32 {v(X)}, 15, {v(VL)}")
    a(f"s_add_u32 s30, s29, {KG_TAB}")
    a(f"v_lshlrev_b32 {v(B0)}, 7, {v(T)}")
    a(f"v_lshl_add_u32 {v(B0)}, {v(X)}, 1, {v(B0)}")
    a(f"v_add_u32 {v(B0)}, s30, {v(B0)}")
    a(f"v_lshlrev_b32 {v(B1)}, 6, {v(T)}")
    a(f"v_add_u32 {v(B1)}, {v(B1)}, {v(X)}")
    a(f"v_add_u32 {v(B1)}, s30, {v(B1)}")
    for t in range(4):
        a(f"v_cvt_pk_bf16_f32 {v(X+2*t)}, {v(ACC+4*t)}, {v(ACC+4*t+1)}")
        a(f"v_cvt_pk_bf16_f32 {v(X+2*t+1)}, {v(ACC+4*t+2)}, {v(ACC+4*t+3)}")
    def wr(t, base, off, step):
        for r in range(4):
            op = "ds_write_b16" if r % 2 == 0 else "ds_write_b16_d16_hi"
            a(f"{op} {v(base)}, {v(X+2*t+r//2)} offset:{off + step*r}")
    wr(0, B0, 0, 32)
    a("s_mov_b32 exec_hi, 0")
    wr(2, B0, 768, 32)
    a("s_mov_b32 exec_lo, 0x55555555")
    a("s_mov_b32 exec_hi, 0x55555555")
    wr(1, B1, 512, 16)
    wr(3, B1, 1024, 16)
    a("s_mov_b64 exec, 1")
    a(f"v_cvt_pk_bf16_f32 {v(K2048)}, {v(K2048)}, {v(K2048)}")
    a(f"v_mov_b32 {v(T)}, s30")
    a(f"ds_write_b16 {v(T)}, {v(K2048)} offset:1280")
    a("s_mov_b64 exec, -1")
    F0, CB, G, AD, RG = 16, 17, 24, 48, 64
    a(f"v_lshlrev_b32 {v(T)}, 3, {v(VL)}")
    a(f"v_sub_u32 {v(T)}, 2047, {v(T)}")
    a(f"v_cvt_f32_u32 {v(F0)}, {v(T)}")
    a(f"s_sub_u32 s31, s30, {2*0x4280}")
    a(f"v_mov_b32 {v(CB)}, s31")
    LOWB = 18
    a(f"v_lshlrev_b32 {v(LOWB)}, 4, {v(VL)}")
    a(f"s_add_u32 s31, s30, 1022")
    a(f"v_sub_u32 {v(LOWB)}, s31, {v(LOWB)}")
    a(f"v_cmp_le_u32 s[34:35], 48, {v(VL)}")
    a("s_waitcnt lgkmcnt(0)")
    for t in range(4):
        for e in range(4):
            f0, f1, cd = AD, AD+1, AD+2
            a0, a1 = AD+4+2*e, AD+5+2*e
            a(f"v_add_f32 {v(f0)}, {fhex(-(512*t + 2*e))}, {v(F0)}")
            a(f"v_add_f32 {v(f1)}, {fhex(-(512*t + 2*e + 1))}, {v(F0)}")
            a(f"v_cvt_pk_bf16_f32 {v(cd)}, {v(f0)}, {v(f1)}")
            a(f"v_mad_u32_u16 {v(a0)}, {v(cd)}, 2, {v(CB)}")
            a(f"v_mad_u32_u16 {v(a1)}, {v(cd)}, 2, {v(CB)} op_sel:[1,0,0,0]")
            if t == 3:
                a(f"v_add_u32 {v(f0)}, {-4*e}, {v(LOWB)}") if e else a(f"v_mov_b32 {v(f0)}, {v(LOWB)}")
                a(f"v_add_u32 {v(f1)}, {-4*e-2}, {v(LOWB)}")
                a(f"v_cndmask_b32 {v(a0)}, {v(a0)}, {v(f0)}, s[34:35]")
                a(f"v_cndmask_b32 {v(a1)}, {v(a1)}, {v(f1)}, s[34:35]")
            a(f"ds_read_u16 {v(RG+8*t+2*e)}, {v(a0)}")
            a(f"ds_read_u16 {v(RG+8*t+2*e+1)}, {v(a1)}")
    a(f"s_mul_i32 s31, {s(SD)}, {KX_STRIDE}")
    a(f"v_lshlrev_b32 {v(T)}, 4, {v(VL)}")
    a("s_waitcnt lgkmcnt(0)")
    for i in range(16):
        a(f"v_lshl_or_b32 {v(G+i)}, {v(RG+2*i+1)}, 16, {v(RG+2*i)}")
    for t in range(4):
        a(f"buffer_store_dwordx4 {v(G+4*t,4)}, {v(T)}, {s(S_KX,4)}, s31 offen offset:{1024*t}")
    for i in range(4):
        a(f"v_mov_b32 {v(AD+i)}, 0")
    a("s_add_u32 s31, s31, 4096")
    a("s_mov_b64 exec, 15")
    a(f"buffer_store_dwordx4 {v(AD,4)}, {v(T)}, {s(S_KX,4)}, s31 offen")
    a("s_endpgm")
```

```python
from gen_common import *

LN_STRIDE = 1344
LN_LDS = 32 * LN_STRIDE

def load_rows(a, vbase, voff, srdreg):
    for j in range(10):
        a(f"buffer_load_dwordx4 {v(vbase+4*j,4)}, {v(voff)}, {s(srdreg,4)}, 0 offen offset:{128*j}")

def role_ln(a, swg, tag, sc1=False, signal=None):
    SW = 4
    PU, PWS, PW2 = 40, 42, 44
    S_U, S_ST, S_XT, S_W2, S_W2R = 8, 12, 16, 20, 24
    VL, VR, VC, VROW, VOFF, VLDS = 1, 3, 4, 5, 6, 7
    RAW, XF = 16, 64
    load_ptr(a, PU, "u"); load_ptr(a, PWS, "ws"); load_ptr(a, PW2, "w2")
    lane_wave(a, VL, SW, 2)
    a(f"v_lshrrev_b32 {v(VR)}, 3, {v(VL)}")
    a(f"v_and_b32 {v(VC)}, 7, {v(VL)}")
    a(f"s_lshl_b32 s5, {s(swg)}, 5")
    a(f"s_lshl_b32 s6, {s(SW)}, 3")
    a(f"v_add_u32 {v(VLDS)}, s6, {v(VR)}")
    a(f"v_add_u32 {v(VROW)}, s5, {v(VLDS)}")
    a(f"v_mul_u32_u24 {v(VOFF)}, 1280, {v(VROW)}")
    a(f"v_lshl_add_u32 {v(VOFF)}, {v(VC)}, 4, {v(VOFF)}")
    a(f"v_mul_u32_u24 {v(VLDS)}, {LN_STRIDE}, {v(VLDS)}")
    a(f"v_lshl_add_u32 {v(VLDS)}, {v(VC)}, 4, {v(VLDS)}")
    a("s_waitcnt lgkmcnt(0)")
    srd(a, S_U, PU, SZ_U)
    srd(a, S_ST, PWS, SZ_STATS, WS_STATS)
    srd(a, S_XT, PWS, SZ_XNT, WS_XNT)
    srd(a, S_W2, PW2, SZ_W)
    srd(a, S_W2R, PWS, SZ_W2R, WS_W2R)
    load_rows(a, RAW, VOFF, S_U)
    SUM, MEAN, MB, RS, T0, T1 = 8, 9, 10, 11, 12, 13
    for j in range(10):
        a(f"s_waitcnt vmcnt({9-j})")
        for e in range(4):
            r = RAW + 4*j + e; x = XF + 2*(4*j + e)
            a(f"v_lshlrev_b32 {v(x)}, 16, {v(r)}")
            a(f"v_and_b32 {v(x+1)}, 0xffff0000, {v(r)}")
            if j == 0 and e == 0:
                a(f"v_add_f32 {v(SUM)}, {v(x)}, {v(x+1)}")
            else:
                a(f"v_add_f32 {v(SUM)}, {v(SUM)}, {v(x)}")
                a(f"v_add_f32 {v(SUM)}, {v(SUM)}, {v(x+1)}")
    def reduce8(r):
        a(f"v_add_f32_dpp {v(r)}, {v(r)}, {v(r)} quad_perm:[1,0,3,2] row_mask:0xf bank_mask:0xf")
        a(f"v_add_f32_dpp {v(r)}, {v(r)}, {v(r)} quad_perm:[2,3,0,1] row_mask:0xf bank_mask:0xf")
        a(f"v_add_f32_dpp {v(r)}, {v(r)}, {v(r)} row_half_mirror row_mask:0xf bank_mask:0xf")
    reduce8(SUM)
    a(f"v_mul_f32 {v(MEAN)}, {fhex(1/640)}, {v(SUM)}")
    for i in range(80):
        a(f"v_sub_f32 {v(T0)}, {v(XF+i)}, {v(MEAN)}")
        if i == 0:
            a(f"v_mul_f32 {v(SUM)}, {v(T0)}, {v(T0)}")
        else:
            a(f"v_fmac_f32 {v(SUM)}, {v(T0)}, {v(T0)}")
    reduce8(SUM)
    a(f"v_mul_f32 {v(T0)}, {fhex(1/640)}, {v(SUM)}")
    round_bf16(a, T0, T0)
    a(f"v_add_f32 {v(T0)}, {fhex(1e-5)}, {v(T0)}")
    round_bf16(a, T0, T0)
    a(f"v_sqrt_f32 {v(T0)}, {v(T0)}")
    round_bf16(a, T0, T0)
    a(f"v_rcp_f32 {v(RS)}, {v(T0)}")
    round_bf16(a, MB, MEAN)
    a(f"v_lshlrev_b32 {v(T1)}, 3, {v(VROW)}")
    a(f"v_cmp_eq_u32 vcc, 0, {v(VC)}")
    a("s_and_saveexec_b64 s[6:7], vcc")
    a(f"buffer_store_dwordx2 {v(MB,2)}, {v(T1)}, {s(S_ST,4)}, 0 offen" + (" sc1" if sc1 else ""))
    a("s_mov_b64 exec, s[6:7]")
    for p in range(40):
        x = XF + 2*p
        a(f"v_sub_f32 {v(x)}, {v(x)}, {v(MB)}")
        a(f"v_sub_f32 {v(x+1)}, {v(x+1)}, {v(MB)}")
        a(f"v_cvt_pk_bf16_f32 {v(T0)}, {v(x)}, {v(x+1)}")
        a(f"v_lshlrev_b32 {v(x)}, 16, {v(T0)}")
        a(f"v_and_b32 {v(x+1)}, 0xffff0000, {v(T0)}")
        a(f"v_mul_f32 {v(x)}, {v(x)}, {v(RS)}")
        a(f"v_mul_f32 {v(x+1)}, {v(x+1)}, {v(RS)}")
        a(f"v_cvt_pk_bf16_f32 {v(RAW+p)}, {v(x)}, {v(x+1)}")
        if p % 4 == 3:
            j = p // 4
            a(f"ds_write_b128 {v(VLDS)}, {v(RAW+4*j,4)} offset:{128*j}")
    if signal:
        signal(a)
    W2REG = 160
    lab_nor = f"L_ln_noload_{tag}"
    a(f"s_cmp_ge_u32 {s(swg)}, {NKS}")
    a(f"s_cbranch_scc1 {lab_nor}")
    load_rows(a, W2REG, VOFF, S_W2)
    a.label(lab_nor)
    a("s_waitcnt lgkmcnt(0)")
    a("s_barrier")
    VT, VST = 14, 15
    a(f"v_and_b32 {v(T0)}, 15, {v(VL)}")
    a(f"v_lshrrev_b32 {v(T1)}, 2, {v(T0)}")
    a(f"v_mul_u32_u24 {v(VT)}, {LN_STRIDE}, {v(T1)}")
    a(f"v_and_b32 {v(T0)}, 3, {v(T0)}")
    a(f"v_lshl_add_u32 {v(VT)}, {v(T0)}, 3, {v(VT)}")
    a(f"v_lshrrev_b32 {v(T1)}, 4, {v(VL)}")
    a(f"v_lshl_add_u32 {v(VT)}, {v(T1)}, 5, {v(VT)}")
    a(f"s_lshl_b32 s5, {s(SW)}, 7")
    a(f"v_add_u32 {v(VT)}, s5, {v(VT)}")
    a(f"v_lshlrev_b32 {v(VST)}, 12, {v(VL)}")
    a(f"s_lshl_b32 s5, {s(swg)}, 6")
    a(f"v_add_u32 {v(VST)}, s5, {v(VST)}")
    a(f"s_lshl_b32 s5, {s(SW)}, 18")
    lab_skip = f"L_ln_skip_{tag}"
    for i in range(3):
        if i == 2:
            a(f"s_cmp_ge_u32 {s(SW)}, 2")
            a(f"s_cbranch_scc1 {lab_skip}")
        base = 64 + 16*i
        for rho in range(8):
            a(f"ds_read_b64_tr_b16 {v(base+2*rho,2)}, {v(VT)} offset:{512*i + 4*LN_STRIDE*rho}")
        a("s_waitcnt lgkmcnt(0)")
        for q in range(4):
            a(f"buffer_store_dwordx4 {v(base+4*q,4)}, {v(VST)}, {s(S_XT,4)}, s5 offen offset:{16*q}")
        a(f"s_add_u32 s5, s5, {4<<18}")
    a.label(lab_skip)
    lab_end = f"L_ln_end_{tag}"
    a(f"s_cmp_ge_u32 {s(swg)}, {NKS}")
    a(f"s_cbranch_scc1 {lab_end}")
    a("s_barrier")
    a("s_waitcnt vmcnt(0)")
    for j in range(10):
        a(f"ds_write_b128 {v(VLDS)}, {v(W2REG+4*j,4)} offset:{128*j}")
    a("s_waitcnt lgkmcnt(0)")
    a("s_barrier")
    a(f"v_lshrrev_b32 {v(T0)}, 4, {v(VL)}")
    a(f"v_and_b32 {v(T1)}, 1, {v(T0)}")
    a(f"v_lshlrev_b32 {v(T1)}, 4, {v(T1)}")
    a(f"v_lshrrev_b32 {v(T0)}, 1, {v(T0)}")
    a(f"v_lshl_add_u32 {v(T1)}, {v(T0)}, 2, {v(T1)}")
    a(f"v_and_b32 {v(T0)}, 15, {v(VL)}")
    a(f"v_lshrrev_b32 {v(VT)}, 2, {v(T0)}")
    a(f"v_add_u32 {v(T1)}, {v(T1)}, {v(VT)}")
    a(f"v_mul_u32_u24 {v(VT)}, {LN_STRIDE}, {v(T1)}")
    a(f"v_and_b32 {v(T0)}, 3, {v(T0)}")
    a(f"v_lshl_add_u32 {v(VT)}, {v(T0)}, 3, {v(VT)}")
    a(f"s_mul_i32 s5, {s(SW)}, 320")
    a(f"v_add_u32 {v(VT)}, s5, {v(VT)}")
    a(f"v_lshlrev_b32 {v(VST)}, 4, {v(VL)}")
    a(f"v_add_u32 {v(T0)}, 4096, {v(VST)}")
    for cbl in range(2):
        a(f"s_lshl_b32 s5, {s(SW)}, 1")
        a(f"s_add_u32 s5, s5, {cbl}")
        a(f"s_mul_i32 s5, s5, {NKS}")
        a(f"s_add_u32 s5, s5, {s(swg)}")
        a("s_mul_i32 s5, s5, 5120")
        base = 64 + 20*cbl
        for dt in range(5):
            for rho in range(2):
                a(f"ds_read_b64_tr_b16 {v(base+4*dt+2*rho,2)}, {v(VT)} offset:{160*cbl + 32*dt + 8*LN_STRIDE*rho}")
        a("s_waitcnt lgkmcnt(0)")
        for dt in range(5):
            if dt < 4:
                a(f"buffer_store_dwordx4 {v(base+4*dt,4)}, {v(VST)}, {s(S_W2R,4)}, s5 offen offset:{1024*dt}")
            else:
                a(f"buffer_store_dwordx4 {v(base+4*dt,4)}, {v(T0)}, {s(S_W2R,4)}, s5 offen")
    a.label(lab_end)
    a("s_endpgm")
```

```python
import sys
sys.path.insert(0, "tools")
from gen_common import *
from asmlib import kernel_header, kernel_descriptor
import hazard
from role_ln import role_ln, LN_LDS
from role_kgen import role_kgen, KG_WAVE_LDS
from role_gemm1 import role_gemm1, G1_LDS
from role_conv import role_conv, CV_LDS
from role_gemm2 import role_gemm2, G2_LDS

HEADER = open("kernarg_header.txt").read() + """; Fused S4D-conv / SiLU-FFN block for gfx950 (generated by tools/gen.py)
; out = x + s * silu(silu(xn @ w1) @ w2),  s = causal_conv(K, xn) + xn * D_skip,  xn = layernorm(x)
"""

def dispatch(a, roles, tag):
    total = 0
    labels = []
    for i, (cnt, _) in enumerate(roles):
        lab = f"L_role_{tag}_{i}"
        labels.append(lab)
        total += cnt
        a(f"s_cmp_lt_u32 s2, {total}")
        a(f"s_cbranch_scc1 {lab}")
    a("s_endpgm")
    first = 0
    for i, (cnt, emit) in enumerate(roles):
        a.label(labels[i])
        a(f"s_sub_u32 s3, s2, {first}")
        emit(a, 3, f"{tag}_{i}")
        first += cnt
    return total

def build(kernels):
    head = HEADER
    body = '.amdgcn_target "amdgcn-amd-amdhsa--gfx950"\n.text\n'
    desc = '.section .rodata,"a"\n'
    for name, roles, lds in kernels:
        a = Asm()
        kernel_header(a, name)
        n = dispatch(a, roles, name.replace("_kernel", ""))
        lines, added = hazard.fix(a.lines)
        body += "\n".join(lines) + "\n"
        head += f"; @launch kernel={name} grid=({n},1,1) block=(256,1,1) lds={lds}\n"
        desc += ".p2align 6\n" + kernel_descriptor(name, 256, 102, 256, extra=(".amdhsa_ieee_mode 0",))
        print(f"{name}: {n} workgroups, lds {lds}, {len(lines)} lines, {added} wait states added", file=sys.stderr)
    return head + body + desc

def plan4():
    return [
        ("pre_kernel", [(64, role_ln), (160, role_kgen)], max(LN_LDS, 4*KG_WAVE_LDS)),
        ("gemm1_kernel", [(224, role_gemm1)], G1_LDS),
        ("conv_kernel", [(256, role_conv)], CV_LDS),
        ("gemm2_kernel", [(256, role_gemm2)], G2_LDS),
    ]

if __name__ == "__main__":
    plan = sys.argv[1]; out = sys.argv[2]
    open(out, "w").write(build(globals()[plan]()))
```
